```python
import torch

def _softmax(x, axis=-1):
    return torch.softmax(x, dim=axis)
def _gelu(x):
    return torch.nn.functional.gelu(x, approximate="tanh")
def _silu(x):
    return torch.nn.functional.silu(x)
def _sigmoid(x):
    return torch.sigmoid(x)
def _layernorm(x, axis=-1, eps=1e-5):
    m = x.mean(dim=axis, keepdim=True)
    v = x.var(dim=axis, keepdim=True, unbiased=False)
    return (x - m) / torch.sqrt(v + eps)
def _scatter_add(tgt, idx, src, axis=0):
    return tgt.clone().index_add_(axis, idx, src)
def _segment_sum(src, seg, n):
    out = torch.zeros((n,) + src.shape[1:], dtype=src.dtype)
    return out.index_add_(0, seg, src)
def _pad(x, pw):
    flat = tuple(v for pair in reversed(pw) for v in pair)
    return torch.nn.functional.pad(x, flat)

kernel_name = 'parallel_sum__softmax_full_mha__geglu_ffn__prompt'

def setup_inputs():

    _w = (lambda a: (lambda t: t.to(torch.bfloat16) if t.is_floating_point() else t)(torch.as_tensor(a)))
    def _A_setup():
        B, S, D = 1, 2048, 640
        return {
            "x": _w((lambda *s: torch.randn(*s, dtype=torch.bfloat16) * 0.05)(B, S, D)),
            "wqkv": _w((lambda *s: torch.randn(*s, dtype=torch.bfloat16) * 0.2)(D, 3 * D)),
            "wo": _w((lambda *s: torch.randn(*s, dtype=torch.bfloat16) * 0.1)(D, D)),
        }
    _A_in = _A_setup()

    def _B_setup():
        B, S, D, F = 1, 2048, 640, 1728
        return {
            "x": _w((lambda *s: torch.randn(*s, dtype=torch.bfloat16) * 0.05)(B, S, D)),
            "w_gate": _w((lambda *s: torch.randn(*s, dtype=torch.bfloat16) * 0.1)(D, F)),
            "w_up": _w((lambda *s: torch.randn(*s, dtype=torch.bfloat16) * 0.1)(D, F)),
            "w_down": _w((lambda *s: torch.randn(*s, dtype=torch.bfloat16) * 0.1)(F, D)),
        }
    _B_in = _B_setup()

    return {
        "A_x": _A_in["x"],
        "A_wqkv": _A_in["wqkv"],
        "A_wo": _A_in["wo"],
        "B_x": _B_in["x"],
        "B_w_gate": _B_in["w_gate"],
        "B_w_up": _B_in["w_up"],
        "B_w_down": _B_in["w_down"],
    }

def reference(A_x, A_wqkv, A_wo, B_x, B_w_gate, B_w_up, B_w_down):
    def _A_ref(x, wqkv, wo):
        B, S, D = x.shape
        H = 32; Dh = D // H
        qkv = (lambda x, *d: x.permute(*d))((x @ wqkv).reshape(B, S, 3, H, Dh), 2, 0, 3, 1, 4)
        q, k, v = qkv[0], qkv[1], qkv[2]
        scale = Dh ** -0.5
        scores = torch.einsum("bhqd,bhkd->bhqk", q, k) * scale
        p = _softmax(scores, axis=-1)
        o = torch.einsum("bhqk,bhkd->bhqd", p, v)
        return (lambda x, *d: x.permute(*d))(o, 0, 2, 1, 3).reshape(B, S, D) @ wo

    def _B_ref(x, w_gate, w_up, w_down):
        return (_gelu(x @ w_gate) * (x @ w_up)) @ w_down

    x = A_x
    xn = _layernorm(x, axis=-1)
    return x + _A_ref(xn, A_wqkv, A_wo) + _B_ref(xn, B_w_gate, B_w_up, B_w_down)
```

```python
import re

TRANS = ("v_exp_f32", "v_log_f32", "v_rcp_f32", "v_rsq_f32", "v_sqrt_f32", "v_sin_f32", "v_cos_f32",
         "v_exp_f16", "v_rcp_f16", "v_rcp_iflag_f32")

def vr(a, n=1):
    return f"v{a}" if n == 1 else f"v[{a}:{a+n-1}]"
def sr(a, n=1):
    return f"s{a}" if n == 1 else f"s[{a}:{a+n-1}]"

_reg_re = re.compile(r"^(-?)(?:abs\()?\|?([vsa])(?:(\d+)|\[(\d+):(\d+)\])\|?\)?$")

def parse_reg(tok):
    tok = tok.strip()
    if tok in ("vcc", "vcc_lo", "vcc_hi"): return {("vcc", 0)}
    if tok in ("exec", "exec_lo", "exec_hi"): return {("exec", 0)}
    if tok == "m0": return {("m0", 0)}
    if tok == "scc": return set()
    m = _reg_re.match(tok)
    if not m: return set()
    k = m.group(2)
    if m.group(3) is not None:
        return {(k, int(m.group(3)))}
    return {(k, i) for i in range(int(m.group(4)), int(m.group(5)) + 1)}

def split_ops(s):
    ops, depth, cur = [], 0, ""
    for ch in s:
        if ch in "[(": depth += 1
        if ch in "])": depth -= 1
        if ch == "," and depth == 0:
            ops.append(cur.strip()); cur = ""
        else:
            cur += ch
    if cur.strip(): ops.append(cur.strip())
    return ops

class Ins:
    __slots__ = ("text", "mn", "ops", "mods", "wr", "rd", "kind", "states", "target", "A", "B", "C", "passes", "isnop")
    def __init__(self, text):
        self.text = text
        t = text.split(";")[0].strip()
        parts = t.split(None, 1)
        self.mn = parts[0]
        rest = parts[1] if len(parts) > 1 else ""
        ops = split_ops(rest)
        self.mods = ""
        if ops:
            last = ops[-1]
            depth = 0
            for i, ch in enumerate(last):
                if ch in "[(": depth += 1
                if ch in "])": depth -= 1
                if ch.isspace() and depth == 0:
                    self.mods = last[i:].strip(); ops[-1] = last[:i]; break
        self.ops = ops
        self.wr, self.rd = set(), set()
        self.target = None
        self.A = self.B = self.C = set()
        self.passes = 0
        self.states = 1
        self.isnop = False
        mn = self.mn
        R = [parse_reg(o) for o in ops]
        allr = lambda l: set().union(*l) if l else set()
        if mn == "s_nop":
            self.kind = "nop"; self.states = int(ops[0], 0) + 1; self.isnop = True
        elif mn.startswith("v_mfma"):
            self.kind = "mfma"
            self.wr = R[0]; self.A, self.B, self.C = R[1], R[2], R[3]
            self.rd = R[1] | R[2] | R[3]
            self.passes = 8 if "32x32" in mn else 4
        elif mn.startswith("v_cmp"):
            self.kind = "valu"; self.wr = set(R[0]); self.rd = allr(R[1:])
            if mn.startswith("v_cmpx"): self.wr |= {("exec", 0)}
        elif mn.startswith("v_permlane"):
            self.kind = "valu"; self.wr = R[0] | R[1]; self.rd = R[0] | R[1]
        elif mn.startswith(("v_add_co", "v_sub_co", "v_addc_co", "v_subb_co", "v_div_scale", "v_mad_u64")):
            self.kind = "valu"; self.wr = R[0] | R[1]; self.rd = allr(R[2:])
        elif mn.startswith("v_"):
            self.kind = "valu"; self.wr = set(R[0]); self.rd = allr(R[1:])
            if mn.startswith(("v_fmac", "v_dot2c", "v_mac", "v_pk_fmac", "v_writelane")) or "UNUSED_PRESERVE" in self.mods or "_dpp" in mn:
                self.rd |= R[0]
            if mn.startswith("v_cndmask") and len(ops) == 3: self.rd |= {("vcc", 0)}
        elif mn.startswith("ds_"):
            self.kind = "ds"
            if mn.startswith(("ds_read", "ds_bpermute", "ds_permute", "ds_swizzle")) or "_rtn" in mn:
                self.wr = set(R[0]); self.rd = allr(R[1:])
            else:
                self.rd = allr(R)
        elif mn.startswith(("buffer_", "global_")):
            self.kind = "vmem"
            mods = self.mods.split()
            if mn in ("buffer_wbl2", "buffer_inv"):
                pass
            elif "load" in mn and "lds" not in mods and "_lds_" not in mn:
                self.wr = set(R[0]); self.rd = allr(R[1:])
            elif "atomic" in mn and "sc0" in mods:
                self.wr = set(R[0]); self.rd = allr(R)
            else:
                self.rd = allr(R)
                if "lds" in mods or "_lds_" in mn: self.rd |= {("m0", 0)}
        elif mn.startswith(("s_cbranch", "s_branch")):
            self.kind = "branch"; self.target = ops[0]
        elif mn in ("s_endpgm",):
            self.kind = "end"
        elif mn.startswith(("s_waitcnt", "s_barrier", "s_setprio", "s_sleep", "s_cmp", "s_bitcmp")):
            self.kind = "salu"; self.rd = allr(R)
        elif mn.startswith("s_load") or mn.startswith("s_memtime") or mn.startswith("s_memrealtime"):
            self.kind = "smem"; self.wr = set(R[0]); self.rd = allr(R[1:])
        elif mn.startswith("s_"):
            self.kind = "salu"; self.wr = set(R[0]); self.rd = allr(R[1:])
            if "saveexec" in mn: self.wr |= {("exec", 0)}
        else:
            raise ValueError("unknown instruction: " + text)

def need(prod, cons):
    n = 0
    pk, ck = prod.kind, cons.kind
    pv = {r for r in prod.wr if r[0] in ("v", "a")}
    ps = {r for r in prod.wr if r[0] in ("s", "vcc")}
    if pk == "valu":
        if ck == "mfma" and pv & cons.rd: n = max(n, 2)
        if ck == "valu":
            if prod.mn.split("_e")[0] in TRANS or prod.mn in TRANS:
                if pv & (cons.rd) and not (cons.mn in TRANS): n = max(n, 1)
            if cons.mn.startswith("v_permlane") and pv & cons.rd: n = max(n, 2)
            if ("_dpp" in cons.mn or "quad_perm" in cons.mods or "row_" in cons.mods) and pv & cons.rd: n = max(n, 2)
            if cons.mn.startswith(("v_readlane", "v_readfirstlane")) and pv & cons.rd: n = max(n, 1)
            if ps & cons.rd: n = max(n, 4 if cons.mn.startswith(("v_readlane", "v_writelane", "v_div_fmas")) else 2)
            if ("sdwa" in prod.mn or "op_sel" in prod.mods) and pv & (cons.rd | cons.wr): n = max(n, 1)
            if prod.mn.startswith("v_dot") and pv & (cons.rd | cons.wr):
                same = cons.mn == prod.mn
                if not (same and not (pv & set().union(*[parse_reg(o) for o in cons.ops[1:3]]))): n = max(n, 3)
            if ("exec", 0) in prod.wr:
                n = max(n, 5)
        if ck == "mfma" and ("exec", 0) in prod.wr: n = max(n, 4)
        if ck in ("vmem",) and ps & cons.rd: n = max(n, 5)
        if ck in ("vmem", "ds") and prod.mn.startswith("v_dot") and pv & cons.rd: n = max(n, 3)
    if pk == "mfma":
        P = prod.passes
        big = {8: 12, 4: 8}[P]
        if ck == "mfma":
            if pv & (cons.A | cons.B): n = max(n, big)
            if pv & cons.C:
                if cons.C == prod.wr and cons.passes == P: pass
                else: n = max(n, P + 2)
            elif pv & cons.wr: n = max(n, big)
        elif ck in ("valu", "vmem", "ds"):
            if pv & (cons.rd | cons.wr): n = max(n, big)
        if ck == "valu" and prod.C & cons.wr: n = max(n, {8: 7, 4: 3}[P])
    if pk == "salu" and ("m0", 0) in prod.wr and ("m0", 0) in cons.rd and ck in ("vmem", "ds"): n = max(n, 1)
    if pk == "vmem" and ("store" in prod.mn or "atomic" in prod.mn) and ("x4" in prod.mn or "x3" in prod.mn):
        data = parse_reg(prod.ops[0]) if prod.mn.startswith("buffer_") else parse_reg(prod.ops[1])
        if data & cons.wr: n = max(n, 2 if ck in ("valu", "mfma") else 1)
    return n

MAXD = 20

class Prog:
    def __init__(self):
        self.items = []
        self.uid = 0
    def e(self, text):
        for line in text.strip().split("\n"):
            line = line.strip()
            if not line or line.startswith(";"): continue
            if line.endswith(":"): self.items.append(("l", line[:-1]))
            elif line.startswith("."): self.items.append(("r", line))
            else: self.items.append(("i", Ins(line)))
    def label(self, name): self.items.append(("l", name))
    def raw(self, text): self.items.append(("r", text))
    def newlabel(self, p="L"):
        self.uid += 1
        return f"{p}_{self.uid}"
    def pad(self, verbose=False):
        total = 0
        items = self.items
        def maps():
            br = {}
            for idx, (k, x) in enumerate(items):
                if k == "i" and x.kind == "branch":
                    br.setdefault(x.target, []).append(idx)
            return br
        changed = True
        while changed:
            changed = False
            branches = maps()
            def preds(idx):
                out = []
                j = idx - 1
                while j >= 0:
                    k, x = items[j]
                    if k == "l":
                        out += branches.get(x, [])
                    elif k == "i":
                        if not (x.kind == "end" or x.mn == "s_branch"): out.append(j)
                        break
                    elif k == "r" and x.startswith(".p2align 8"):
                        break
                    j -= 1
                return out
            idx = 0
            while idx < len(items):
                k, c = items[idx]
                if k != "i" or c.isnop or c.kind in ("salu", "branch", "end", "smem"):
                    idx += 1; continue
                req = 0; why = None
                stack = [(p, 0) for p in preds(idx)]
                seen = {}
                while stack:
                    p, d = stack.pop()
                    if d >= MAXD: continue
                    if p in seen and seen[p] <= d: continue
                    seen[p] = d
                    pi = items[p][1]
                    n = need(pi, c) - d
                    if n > req: req = n; why = pi
                    for q in preds(p): stack.append((q, d + pi.states))
                if req > 0:
                    if verbose: print(f"pad {req} before: {c.text}   (after {why.text})")
                    while req > 0:
                        m = min(req, 16)
                        items.insert(idx, ("i", Ins(f"s_nop {m-1}")))
                        idx += 1
                        req -= m; total += 1
                    changed = True
                    branches = maps()
                idx += 1
        return total
    def text(self):
        out = []
        for k, x in self.items:
            if k == "i": out.append("    " + x.text)
            elif k == "l": out.append(x + ":")
            else: out.append(x)
        return "\n".join(out) + "\n"

class Alloc:
    def __init__(self, start=0, limit=256):
        self.next = start; self.limit = limit; self.hi = start
    def __call__(self, n=1, align=None):
        if align is None: align = 1 if n == 1 else (2 if n < 4 else 4)
        a = (self.next + align - 1) // align * align
        self.next = a + n
        assert self.next <= self.limit, f"out of registers ({self.next})"
        self.hi = max(self.hi, self.next)
        return a
```

```python
from asmlib import *

NAME = "parallel_sum__softmax_full_mha__geglu_ffn__prompt"
T, D, H, DH, F = 2048, 640, 32, 20, 1728
KA_X, KA_WQKV, KA_WO, KA_BX, KA_WG, KA_WU, KA_WD, KA_OUT, KA_DBG, KA_WS = 0, 8, 16, 24, 32, 40, 48, 56, 64, 72
SZ_X = T * D * 2
SZ_WQKV = D * 3 * D * 2
SZ_WO = D * D * 2
SZ_WG = D * F * 2
SZ_WD = F * D * 2
WS_QM = 0x0000000
WS_QT = 0x0200000
WS_KM = 0x0400000
WS_KT = 0x0600000
WS_VT = 0x0800000
WS_XN = 0x0C00000
WS_HH = 0x1000000
WS_OO = 0x1800000
WS_STM = 0x1C00000
WS_STR = 0x1C02000
WS_CS = 0x1C04000
WS_SIZE = 0x4000000
QSCALE = (DH ** -0.5) * 1.4426950408889634

import struct
def f32(x): return struct.unpack("<I", struct.pack("<f", x))[0]
def hx(x): return f"0x{x & 0xffffffff:x}"

def srd(p, d, ptr, size):
    p.e(f"s_mov_b32 s{d}, s{ptr}")
    p.e(f"s_and_b32 s{d+1}, s{ptr+1}, 0xffff")
    p.e(f"s_mov_b32 s{d+2}, {hx(size)}")
    p.e(f"s_mov_b32 s{d+3}, 0x00020000")

def kernel_begin(p, name):
    p.raw(f".globl {name}")
    p.raw(".p2align 8")
    p.raw(f".type {name},@function")
    p.label(name)

def kd(name, vgpr, sgpr=96):
    acc = (vgpr + 3) // 4 * 4
    return f""".p2align 6
.amdhsa_kernel {name}
  .amdhsa_next_free_vgpr {vgpr}
  .amdhsa_next_free_sgpr {sgpr}
  .amdhsa_accum_offset {acc}
  .amdhsa_group_segment_fixed_size 0
  .amdhsa_kernarg_size 80
  .amdhsa_user_sgpr_count 2
  .amdhsa_user_sgpr_kernarg_segment_ptr 1
  .amdhsa_system_sgpr_workgroup_id_x 1
.end_amdhsa_kernel
"""

def bf16r(p, dst, src):
    p.e(f"v_cvt_pk_bf16_f32 v{dst}, v{src}, v{src}")
    p.e(f"v_and_b32 v{dst}, 0xffff0000, v{dst}")
```

```python
from common import *
from k_qkv import interleave

CB = 26624
LDS_ATT = 2 * CB + 64
OFFSET = 90.0

def emit_att(p, sWS, sD, sc_ld="", sc_st=""):
    A = Alloc(1)
    lane, a8, a16, gV = A(), A(), A(), A()
    t0, t1, t2, t3 = A(), A(), A(), A()
    mx = A(2)
    Qm = [A(4), A(4)]
    Qt = [[A(4), A(4)], [A(4), A(4)]]
    O = [A(16), A(16)]
    Sb = [A(16), A(16)]
    P = [A(8), A(8)]
    KM = [[A(4), A(4)], [A(4), A(4)]]
    KT = [A(4), A(4)]
    VF = [[A(4) for _ in range(4)] for _ in range(2)]
    sWave, sHead, sTT, sMode, sIt = 24, 25, 26, 27, 28
    sKM, sKT, sVT = 36, 37, 38
    mKM, mKT, mVT = 39, 42, 43
    sLo = 40
    sVm = 44
    sF = 46
    p.e("s_and_b32 s30, s2, 7\ns_lshr_b32 s31, s2, 3")
    p.e(f"s_lshl_b32 s{sHead}, s30, 2\ns_and_b32 s32, s31, 3\ns_add_u32 s{sHead}, s{sHead}, s32")
    p.e(f"s_lshr_b32 s31, s31, 2")
    p.e(f"v_lshrrev_b32 v{t0}, 6, v0")
    p.e(f"v_and_b32 v{lane}, 63, v0")
    p.e(f"v_readfirstlane_b32 s{sWave}, v{t0}")
    p.e(f"v_lshlrev_b32 v{a16}, 4, v{lane}")
    p.e(f"v_lshlrev_b32 v{a8}, 3, v{lane}")
    p.e(f"s_lshl_b32 s{sTT}, s31, 3")
    p.e(f"s_lshl_b32 s30, s{sWave}, 1")
    p.e(f"s_add_u32 s{sTT}, s{sTT}, s30")
    p.e(f"s_mov_b32 s{sLo}, -1\ns_mov_b32 s{sLo+1}, 0")
    p.e(f"s_mov_b32 s{sVm}, 0xfffff\ns_mov_b32 s{sVm+1}, 0xfffff")
    p.e(f"s_lshl_b32 s{mKM}, s{sWave}, 11")
    p.e(f"s_lshl_b32 s{mKT}, s{sWave}, 9\ns_add_u32 s{mKT}, s{mKT}, 8192")
    p.e(f"s_lshl_b32 s{mVT}, s{sWave}, 12\ns_add_u32 s{mVT}, s{mVT}, 10240")
    p.e(f"v_lshrrev_b32 v{t0}, 5, v{lane}")
    p.e(f"v_and_b32 v{t1}, 31, v{lane}")
    p.e(f"v_mul_u32_u24 v{t0}, 320, v{t0}")
    p.e(f"v_lshl_add_u32 v{gV}, v{t1}, 4, v{t0}")
    p.e(f"s_mov_b32 s{sMode}, 0")
    p.e(f"v_lshrrev_b32 v{t0}, 5, v{lane}")
    p.e(f"v_mul_u32_u24 v{t0}, {CB}, v{t0}")
    p.e(f"v_and_b32 v{t1}, 31, v{lane}")
    p.e(f"v_lshl_add_u32 v{t0}, v{t1}, 9, v{t0}")
    for i in range(4): p.e(f"v_mov_b32 v{P[0]+i}, 0x3f803f80")
    p.e(f"ds_write_b128 v{t0}, {vr(P[0],4)} offset:{10240+320}")
    p.e(f"v_mov_b32 v{t2}, 0")
    p.e(f"ds_write_b32 v{t2}, v{t2} offset:{2*CB}")
    for par in range(2):
        p.e(f"v_mov_b32 v{KT[par]+2}, 0x3f803f80")
        p.e(f"v_mov_b32 v{KT[par]+3}, 0x3f80")

    def dma(buf):
        b = buf * CB
        g = []
        g.append(f"s_add_u32 m0, s{mKM}, {b}\nbuffer_load_dwordx4 v{a16}, {sr(sD,4)}, s{sKM} offen lds")
        g.append(f"buffer_load_dwordx4 v{a16}, {sr(sD,4)}, s{sKM} offen offset:1024 lds")
        g.append(f"s_add_u32 m0, s{mKT}, {b}\ns_mov_b64 exec, {sr(sLo,2)}\nbuffer_load_dwordx4 v{a16}, {sr(sD,4)}, s{sKT} offen lds\ns_mov_b64 exec, -1")
        for i in range(4):
            g.append(f"s_add_u32 m0, s{mVT}, {b+i*384}\ns_mov_b64 exec, {sr(sVm,2)}\nbuffer_load_dwordx4 v{gV}, {sr(sD,4)}, s{sVT} offen offset:{640*i} lds\ns_mov_b64 exec, -1")
        g.append(f"s_add_u32 s{sKM}, s{sKM}, 8192\ns_add_u32 s{sKT}, s{sKT}, 2048\ns_add_u32 s{sVT}, s{sVT}, {16*640}")
        return [x.replace(" lds", " lds " + sc_ld) if sc_ld else x for x in g]

    p.label("L_att_start")
    p.e(f"s_lshl_b32 s{sKM}, s{sHead}, 16\ns_add_u32 s{sKM}, s{sKM}, s{mKM}\ns_add_u32 s{sKM}, s{sKM}, {hx(WS_KM)}")
    p.e(f"s_lshl_b32 s{sKT}, s{sHead}, 14\ns_lshl_b32 s30, s{sWave}, 9\ns_add_u32 s{sKT}, s{sKT}, s30\ns_add_u32 s{sKT}, s{sKT}, {hx(WS_KT)}")
    p.e(f"s_mul_i32 s{sVT}, s{sHead}, 81920\ns_mul_i32 s30, s{sWave}, 2560\ns_add_u32 s{sVT}, s{sVT}, s30\ns_add_u32 s{sVT}, s{sVT}, {hx(WS_VT)}")
    p.e(f"s_mov_b32 s{sD+2}, {hx(WS_SIZE)}")
    p.e(f"s_lshl_b32 s30, s{sHead}, 16\ns_lshl_b32 s31, s{sTT}, 10\ns_add_u32 s30, s30, s31\ns_add_u32 s30, s30, {hx(WS_QM)}")
    p.e(f"buffer_load_dwordx4 {vr(Qm[0],4)}, v{a16}, {sr(sWS,4)}, s30 offen {sc_ld}")
    p.e(f"buffer_load_dwordx4 {vr(Qm[1],4)}, v{a16}, {sr(sWS,4)}, s30 offen offset:1024 {sc_ld}")
    p.e(f"s_lshl_b32 s30, s{sHead}, 14\ns_lshl_b32 s31, s{sTT}, 8\ns_add_u32 s30, s30, s31\ns_add_u32 s30, s30, {hx(WS_QT)}")
    p.e(f"v_and_b32 v{t0}, 0xff, v{a8}")
    p.e(f"buffer_load_dwordx2 {vr(Qt[0][0],2)}, v{t0}, {sr(sWS,4)}, s30 offen {sc_ld}")
    p.e(f"buffer_load_dwordx2 {vr(Qt[1][0],2)}, v{t0}, {sr(sWS,4)}, s30 offen offset:256 {sc_ld}")
    p.e(f"s_lshl_b32 s32, s{sHead}, 16\ns_add_u32 s32, s32, {hx(WS_KM)}")
    p.e(f"s_lshl_b32 s33, s{sHead}, 14\ns_add_u32 s33, s33, {hx(WS_KT)}")
    def scan_loads():
        p.e(f"buffer_load_dwordx4 {vr(KM[0][0],4)}, v{a16}, {sr(sWS,4)}, s32 offen {sc_ld}")
        p.e(f"buffer_load_dwordx4 {vr(KM[0][1],4)}, v{a16}, {sr(sWS,4)}, s32 offen offset:1024 {sc_ld}")
        p.e(f"buffer_load_dwordx2 {vr(KT[0],2)}, v{a8}, {sr(sWS,4)}, s33 offen {sc_ld}")
    scan_loads()
    for buf in range(2):
        for g in dma(buf): p.e(g)
    p.e(f"v_mov_b32 v{mx}, 0xff800000\nv_mov_b32 v{mx+1}, 0xff800000")
    p.e("s_waitcnt vmcnt(17)")
    for q in range(2):
        for i in range(2):
            p.e(f"v_cndmask_b32 v{Qt[q][1]+i}, v{Qt[q][0]+i}, 0, {sr(sLo,2)}")
            p.e(f"v_cndmask_b32 v{Qt[q][0]+i}, 0, v{Qt[q][0]+i}, {sr(sLo,2)}")
        for eo in range(2):
            p.e(f"v_mov_b32 v{Qt[q][eo]+2}, 0\nv_mov_b32 v{Qt[q][eo]+3}, 0")
    p.e(f"s_cmp_eq_u32 s{sMode}, 0")
    p.e(f"s_cselect_b32 s{sIt}, 1, 32")
    p.e("s_waitcnt vmcnt(14)")
    p.label("L_att_scan")
    tiles = [Sb[0], Sb[1], O[0], O[1]]
    for kt in range(2):
        for q in range(2):
            d = vr(tiles[2 * kt + q], 16)
            p.e(f"v_mfma_f32_32x32x16_bf16 {d}, {vr(KM[0][kt],4)}, {vr(Qm[q],4)}, 0")
            p.e(f"v_mfma_f32_32x32x16_bf16 {d}, {vr(KT[0],4)}, {vr(Qt[q][kt],4)}, {d}")
    p.e(f"s_sub_u32 s{sIt}, s{sIt}, 1")
    p.e(f"s_cmp_eq_u32 s{sIt}, 0")
    p.e(f"s_cbranch_scc1 L_att_scan_nold")
    p.e(f"s_add_u32 s32, s32, 2048\ns_add_u32 s33, s33, 512")
    p.e("s_nop 7")
    scan_loads()
    p.label("L_att_scan_nold")
    for kt in range(2):
        for q in range(2):
            b = tiles[2 * kt + q]
            for i in range(8):
                p.e(f"v_max3_f32 v{mx+q}, v{b+2*i}, v{b+2*i+1}, v{mx+q}")
    p.e(f"s_cmp_eq_u32 s{sIt}, 0")
    p.e(f"s_cbranch_scc1 L_att_scan_done")
    p.e("s_waitcnt vmcnt(0)")
    p.e("s_branch L_att_scan")
    p.label("L_att_scan_done")
    p.e(f"s_cmp_eq_u32 s{sMode}, 0")
    p.e(f"s_cselect_b32 s30, {hx(f32(-OFFSET))}, 0")
    for q in range(2):
        p.e(f"v_mov_b32 v{t0}, v{mx+q}")
        p.e(f"v_permlane32_swap_b32 v{t0}, v{mx+q}")
        p.e(f"v_max_f32 v{t0}, v{t0}, v{mx+q}")
        p.e(f"v_sub_f32 v{t0}, s30, v{t0}")
        bf16r(p, t1, t0)
        p.e(f"v_sub_f32 v{t1}, v{t0}, v{t1}")
        bf16r(p, t2, t1)
        p.e(f"v_sub_f32 v{t2}, v{t1}, v{t2}")
        p.e(f"v_cvt_pk_bf16_f32 v{t0}, v{t0}, v{t1}")
        p.e(f"v_cvt_pk_bf16_f32 v{t2}, v{t2}, 0")
        p.e(f"v_cndmask_b32 v{Qt[q][0]+2}, 0, v{t0}, {sr(sLo,2)}")
        p.e(f"v_cndmask_b32 v{Qt[q][0]+3}, 0, v{t2}, {sr(sLo,2)}")
        p.e(f"v_cndmask_b32 v{Qt[q][1]+2}, v{t0}, 0, {sr(sLo,2)}")
        p.e(f"v_cndmask_b32 v{Qt[q][1]+3}, v{t2}, 0, {sr(sLo,2)}")
    for q in range(2):
        for i in range(16): p.e(f"v_mov_b32 v{O[q]+i}, 0")
    for i in range(4):
        p.e(f"v_mov_b32 v{P[1]+4+i}, 0")
        p.e(f"v_mov_b32 v{VF[1][3]+i}, 0")
    def reads(buf, st, par):
        b = buf * CB
        g = [f"ds_read_b128 {vr(KM[par][i],4)}, v{a16} offset:{b+(2*st+i)*1024}" for i in range(2)]
        g.append(f"ds_read_b64 {vr(KT[par],2)}, v{a8} offset:{b+8192+st*512}")
        g += [f"ds_read_b128 {vr(VF[par][i],4)}, v{a16} offset:{b+10240+(4*st+i)*1024}" for i in range(4)]
        return g
    p.e("s_waitcnt vmcnt(7) lgkmcnt(0)")
    p.e("s_barrier")
    for g in reads(0, 0, 0): p.e(g)
    p.e("s_waitcnt lgkmcnt(0)")
    def qk(t):
        n, kt, q = (t // 4) % 8, (t >> 1) & 1, t & 1
        par = n & 1
        d = vr(Sb[t & 1], 16)
        return (f"v_mfma_f32_32x32x16_bf16 {d}, {vr(KM[par][kt],4)}, {vr(Qm[q],4)}, 0",
                f"v_mfma_f32_32x32x16_bf16 {d}, {vr(KT[par],4)}, {vr(Qt[q][kt],4)}, {d}")
    def pv(t, half):
        t %= 32
        n, kt, q = t // 4, (t >> 1) & 1, t & 1
        par = n & 1
        return f"v_mfma_f32_32x32x16_bf16 {vr(O[q],16)}, {vr(VF[par][2*kt+half],4)}, {vr(P[t&1]+4*half,4)}, {vr(O[q],16)}"
    a, b = qk(0)
    p.e(a); p.e(b)
    p.e(f"s_mov_b32 s{sIt}, 0")
    p.e("s_nop 7")
    p.raw(".p2align 3")
    p.label("L_att_loop")
    for t in range(32):
        n, r = t // 4, t % 4
        S_, P_ = Sb[t & 1], P[t & 1]
        e = [f"v_exp_f32 v{S_+i}, v{S_+i}" for i in range(16)]
        c = [f"v_cvt_pk_bf16_f32 v{P_+i}, v{S_+2*i}, v{S_+2*i+1}" for i in range(8)]
        extra = []
        pre = []
        if r == 1:
            st = n % 4
            buf = n // 4
            if st == 3:
                pre = ["s_waitcnt vmcnt(0)", "s_barrier"]
                if buf == 0:
                    pre = [f"s_cmp_lt_u32 s{sIt}, 3", f"s_cselect_b32 s{sD+2}, {hx(WS_SIZE)}, 0"] + pre
                extra = reads(buf ^ 1, 0, (n + 1) & 1) + dma(buf)
            else:
                extra = reads(buf, st + 1, (n + 1) & 1)
        if r == 3:
            pre = ["s_waitcnt lgkmcnt(0)"]
        qa, qb = qk(t + 1)
        for x in pre: p.e(x)
        seq = [qa] + e[0:5] + [qb] + e[5:8] + c[0:4] + [pv(t - 1, 1)] + e[8:13] + [pv(t, 0)] + e[13:16] + c[4:8]
        k = 0
        for x in seq:
            p.e(x)
            if x.startswith("v_exp") and k < len(extra):
                p.e(extra[k]); k += 1
        assert k == len(extra)
    p.e(f"s_add_u32 s{sIt}, s{sIt}, 1")
    p.e(f"s_cmp_lt_u32 s{sIt}, 4")
    p.e("s_cbranch_scc1 L_att_loop")
    p.e(pv(31, 1))
    p.e(f"s_mul_i32 s30, s{sTT}, 40960\ns_add_u32 s30, s30, {hx(WS_OO)}")
    p.e(f"s_lshl_b32 s31, s{sHead}, 10\ns_add_u32 s31, s31, s30")
    p.e(f"s_lshr_b32 s32, s{sHead}, 2\ns_lshl_b32 s32, s32, 10\ns_add_u32 s32, s32, s30\ns_add_u32 s32, s32, {32*1024}")
    p.e(f"s_and_b32 s33, s{sHead}, 1\ns_lshl_b32 s33, s33, 9\ns_add_u32 s32, s32, s33")
    p.e(f"s_and_b32 s33, s{sHead}, 2\ns_lshl_b32 s33, s33, 2\ns_add_u32 s32, s32, s33")
    p.e(f"s_mov_b64 {sr(sF,2)}, 0")
    p.e(f"s_movk_i32 s33, 0x207")
    p.e(f"s_mov_b32 s34, {hx(f32(2.0**120))}")
    for q in range(2):
        o = O[q]
        p.e(f"v_mov_b32 v{t0}, v{o+8}\nv_mov_b32 v{t1}, v{o+8}")
        p.e(f"v_permlane32_swap_b32 v{t0}, v{t1}")
        p.e(f"v_cmp_nge_f32 vcc, s34, v{t1}")
        p.e(f"v_rcp_f32 v{t1}, v{t1}")
        p.e(f"s_or_b64 {sr(sF,2)}, {sr(sF,2)}, vcc")
        for i in range(12): p.e(f"v_mul_f32 v{o+i}, v{o+i}, v{t1}")
        for i in range(12):
            p.e(f"v_cmp_class_f32 vcc, v{o+i}, s33")
            if i >= 8: p.e(f"s_and_b64 vcc, vcc, {sr(sLo,2)}")
            p.e(f"s_or_b64 {sr(sF,2)}, {sr(sF,2)}, vcc")
        for i in range(6): p.e(f"v_cvt_pk_bf16_f32 v{o+i}, v{o+2*i}, v{o+2*i+1}")
        p.e(f"buffer_store_dwordx4 {vr(o,4)}, v{a16}, {sr(sWS,4)}, s31 offen {sc_st}")
        p.e(f"s_mov_b64 exec, {sr(sLo,2)}")
        p.e(f"buffer_store_dwordx2 {vr(o+4,2)}, v{a16}, {sr(sWS,4)}, s32 offen {sc_st}")
        p.e("s_mov_b64 exec, -1")
        if q == 0: p.e("s_add_u32 s31, s31, 40960\ns_add_u32 s32, s32, 40960")
    p.e(f"s_cmp_lg_u32 s{sMode}, 0")
    p.e("s_cbranch_scc1 L_att_end")
    p.e(f"s_cmp_eq_u64 {sr(sF,2)}, 0")
    p.e("s_cbranch_scc1 L_att_noflag")
    p.e(f"v_mov_b32 v{t0}, 0\nv_mov_b32 v{t1}, 1")
    p.e(f"ds_write_b32 v{t0}, v{t1} offset:{2*CB}")
    p.label("L_att_noflag")
    p.e("s_waitcnt vmcnt(0) lgkmcnt(0)")
    p.e("s_barrier")
    p.e(f"v_mov_b32 v{t0}, 0")
    p.e(f"ds_read_b32 v{t1}, v{t0} offset:{2*CB}")
    p.e("s_waitcnt lgkmcnt(0)")
    p.e(f"v_readfirstlane_b32 s30, v{t1}")
    p.e("s_nop 3")
    p.e("s_cmp_eq_u32 s30, 0")
    p.e("s_cbranch_scc1 L_att_end")
    p.e(f"s_mov_b32 s{sMode}, 1")
    p.e("s_branch L_att_start")
    p.label("L_att_end")
    return A.hi

G2ST = 8192
LDS_G2 = 4 * G2ST
def emit_g2(p, sWS, sXN, sG, sU, j="s3"):
    A = Alloc(1)
    lane, gA, gB = A(), A(2), A()
    lW = A(2, 1)
    t0, t1, t2, t3 = A(), A(), A(), A()
    XF = A(64); WF = A(32); acc = A(128)
    sWave, sTT, sNS, kA, kB, sIt, mB = 24, 25, 26, 27, 28, 29, 36
    p.e(f"s_and_b32 s30, {j}, 7\ns_mul_i32 s30, s30, 27\ns_lshr_b32 s31, {j}, 3\ns_add_u32 s30, s30, s31")
    p.e(f"s_lshr_b32 s{sNS}, s30, 3\ns_and_b32 s31, s30, 7")
    p.e(f"v_lshrrev_b32 v{t0}, 6, v0")
    p.e(f"v_and_b32 v{lane}, 63, v0")
    p.e(f"v_readfirstlane_b32 s{sWave}, v{t0}")
    p.e(f"v_lshlrev_b32 v{gA}, 4, v{lane}")
    p.e(f"v_add_u32 v{gA+1}, 40960, v{gA}")
    p.e(f"s_lshl_b32 s{sTT}, s31, 3\ns_lshl_b32 s30, s{sWave}, 1\ns_add_u32 s{sTT}, s{sTT}, s30")
    p.e(f"s_mul_i32 s{kA}, s{sTT}, 40960\ns_add_u32 s{kA}, s{kA}, {hx(WS_XN)}")
    p.e(f"s_mul_i32 s{kB}, s{sWave}, {8*3456}\ns_lshl_b32 s30, s{sNS}, 7\ns_add_u32 s{kB}, s{kB}, s30")
    p.e(f"s_lshl_b32 s{mB}, s{sWave}, 10")
    p.e(f"v_lshrrev_b32 v{t0}, 3, v{lane}")
    p.e(f"v_mul_u32_u24 v{t0}, 3456, v{t0}")
    p.e(f"v_bfe_u32 v{t1}, v{lane}, 4, 1")
    p.e(f"v_lshlrev_b32 v{t1}, 2, v{t1}")
    p.e(f"v_and_b32 v{t2}, 7, v{lane}")
    p.e(f"v_xor_b32 v{t1}, v{t1}, v{t2}")
    p.e(f"v_lshl_add_u32 v{gB}, v{t1}, 4, v{t0}")
    p.e(f"v_lshrrev_b32 v{t0}, 5, v{lane}")
    p.e(f"v_bfe_u32 v{t1}, v{lane}, 2, 2")
    p.e(f"v_lshl_add_u32 v{t0}, v{t0}, 3, v{t1}")
    p.e(f"v_lshlrev_b32 v{t0}, 7, v{t0}")
    p.e(f"v_lshrrev_b32 v{t1}, 1, v{t1}")
    p.e(f"v_lshl_add_u32 v{t0}, v{t1}, 6, v{t0}")
    p.e(f"v_bfe_u32 v{t1}, v{lane}, 4, 1")
    p.e(f"v_lshl_add_u32 v{t0}, v{t1}, 5, v{t0}")
    p.e(f"v_and_b32 v{t1}, 3, v{lane}")
    p.e(f"v_lshl_add_u32 v{lW}, v{t1}, 3, v{t0}")
    p.e(f"v_xor_b32 v{lW+1}, 64, v{lW}")
    def dmaB(b):
        return [f"s_add_u32 m0, s{mB}, {b*G2ST}\nbuffer_load_dwordx4 v{gB}, {sr(sG,4)}, s{kB} offen lds",
                f"s_add_u32 m0, s{mB}, {b*G2ST+4096}\nbuffer_load_dwordx4 v{gB}, {sr(sU,4)}, s{kB} offen lds\ns_add_u32 s{kB}, s{kB}, {32*3456}"]
    def ldA(b):
        g = []
        for sub in range(2):
            for m in range(2):
                g.append(f"buffer_load_dwordx4 {vr(XF+16*b+8*sub+4*m,4)}, v{gA+m}, {sr(sXN,4)}, s{kA} offen offset:{1024*sub}")
        g[-1] += f"\ns_add_u32 s{kA}, s{kA}, 2048"
        return g
    def reads(b, sub, buf):
        g = []
        for mat in range(2):
            for jj in range(2):
                for t in range(2):
                    o = b * G2ST + mat * 4096 + (16 * sub + 4 * t) * 128
                    g.append(f"ds_read_b64_tr_b16 {vr(WF+16*buf+8*mat+4*jj+2*t,2)}, v{lW+jj} offset:{o}")
        return g
    def mfmas(b, sub, buf):
        g = []
        for m in range(2):
            for n in range(4):
                d = vr(acc + 64 * m + 16 * n, 16)
                g.append(f"v_mfma_f32_32x32x16_bf16 {d}, {vr(WF+16*buf+4*n,4)}, {vr(XF+16*b+8*sub+4*m,4)}, {d}")
        return g
    for b in range(4):
        for g in dmaB(b) + ldA(b): p.e(g)
    for i in range(128): p.e(f"v_mov_b32 v{acc+i}, 0")
    p.e("s_waitcnt vmcnt(18)")
    p.e("s_barrier")
    for g in reads(0, 0, 0): p.e(g)
    p.e(f"s_mov_b32 s{sIt}, 0")
    p.raw(".p2align 3")
    p.label("L_g2_loop")
    p.e(f"s_cmp_lt_u32 s{sIt}, 4")
    p.e(f"s_cselect_b32 s{sG+2}, {hx(SZ_WG)}, 0")
    p.e(f"s_cselect_b32 s{sU+2}, {hx(SZ_WG)}, 0")
    p.e(f"s_cselect_b32 s{sXN+2}, {hx(WS_SIZE)}, 0")
    for b in range(4):
        p.e("s_waitcnt lgkmcnt(0)")
        for g in interleave(mfmas(b, 0, 0), reads(b, 1, 1)): p.e(g)
        p.e("s_waitcnt vmcnt(12) lgkmcnt(0)")
        p.e("s_barrier")
        la = ldA(b)
        fill = reads((b + 1) % 4, 0, 0) + dmaB(b) + la[:2]
        for g in interleave(mfmas(b, 1, 1), fill): p.e(g)
        for g in la[2:]: p.e(g)
    p.e(f"s_add_u32 s{sIt}, s{sIt}, 1")
    p.e(f"s_cmp_lt_u32 s{sIt}, 5")
    p.e("s_cbranch_scc1 L_g2_loop")
    p.e("s_waitcnt vmcnt(0) lgkmcnt(0)")
    C1 = -2.0 * 0.7978845608028654 * 1.4426950408889634
    p.e(f"v_mov_b32 v{t0}, {hx(f32(C1*0.044715))}")
    p.e(f"s_mul_i32 s30, s{sTT}, {108*1024}\ns_lshl_b32 s31, s{sNS}, 12\ns_add_u32 s30, s30, s31\ns_add_u32 s30, s30, {hx(WS_HH)}")
    tmp = XF
    for m in range(2):
        for jj in range(2):
            g, u = acc + 64 * m + 16 * jj, acc + 64 * m + 32 + 16 * jj
            for i in range(16): p.e(f"v_mul_f32 v{tmp+i}, v{g+i}, v{g+i}")
            for i in range(16): p.e(f"v_fmaak_f32 v{tmp+i}, v{tmp+i}, v{t0}, {hx(f32(C1))}")
            for i in range(16): p.e(f"v_mul_f32 v{tmp+i}, v{tmp+i}, v{g+i}")
            for i in range(16): p.e(f"v_exp_f32 v{tmp+i}, v{tmp+i}")
            for i in range(16): p.e(f"v_mul_f32 v{g+i}, v{g+i}, v{u+i}")
            for i in range(16): p.e(f"v_add_f32 v{tmp+i}, 1.0, v{tmp+i}")
            for i in range(16): p.e(f"v_rcp_f32 v{tmp+i}, v{tmp+i}")
            for i in range(16): p.e(f"v_mul_f32 v{g+i}, v{g+i}, v{tmp+i}")
            for i in range(8): p.e(f"v_cvt_pk_bf16_f32 v{u+i}, v{g+2*i}, v{g+2*i+1}")
            p.e(f"buffer_store_dwordx4 {vr(u,4)}, v{gA}, {sr(sWS,4)}, s30 offen offset:{2048*jj}")
            p.e(f"buffer_store_dwordx4 {vr(u+4,4)}, v{gA}, {sr(sWS,4)}, s30 offen offset:{2048*jj+1024}")
        if m == 0: p.e(f"s_add_u32 s30, s30, {108*1024}")
    return A.hi

def kernel_k2(p):
    kernel_begin(p, "k2_kernel")
    p.e("s_cmp_ge_u32 s2, 472")
    p.e("s_cbranch_scc1 L_k2_end")
    p.e(f"s_load_dwordx2 s[8:9], s[0:1], {KA_WS}")
    p.e(f"s_load_dwordx4 s[4:7], s[0:1], {KA_WG}")
    p.e("s_waitcnt lgkmcnt(0)")
    srd(p, 20, 8, WS_SIZE); srd(p, 16, 8, WS_SIZE)
    p.e("s_cmp_ge_u32 s2, 256")
    p.e("s_cbranch_scc1 L_k2_g2")
    p.e("s_setprio 2")
    v1 = emit_att(p, 20, 16)
    p.e("s_endpgm")
    p.label("L_k2_g2")
    srd(p, 48, 4, SZ_WG); srd(p, 52, 6, SZ_WG)
    p.e("s_sub_u32 s3, s2, 256")
    v2 = emit_g2(p, 20, 16, 48, 52)
    p.label("L_k2_end")
    p.e("s_endpgm")
    return ("k2_kernel", 472, 256, max(LDS_ATT, LDS_G2), max(v1, v2))
```

```python
from common import *

def emit_ln(p, sX, sWS, wg="s2", sc=""):
    X = 16
    Fv = 64
    p.e(f"v_lshrrev_b32 v1, 3, v0")
    p.e(f"v_and_b32 v2, 7, v0")
    p.e(f"v_mul_u32_u24 v3, 1280, v1")
    p.e(f"v_lshl_add_u32 v3, v2, 4, v3")
    p.e(f"s_mul_i32 s30, {wg}, {32*1280}")
    for i in range(10):
        p.e(f"buffer_load_dwordx4 {vr(X+4*i,4)}, v3, {sr(sX,4)}, s30 offen offset:{128*i}")
    p.e(f"v_lshrrev_b32 v4, 1, v2")
    p.e(f"v_lshlrev_b32 v4, 10, v4")
    p.e(f"v_and_b32 v5, 1, v2")
    p.e(f"v_lshl_add_u32 v4, v5, 9, v4")
    p.e(f"v_lshl_add_u32 v4, v1, 4, v4")
    for a in range(4): p.e(f"v_mov_b32 v{8+a}, 0")
    for i in range(10):
        p.e(f"s_waitcnt vmcnt({9-i})")
        for d in range(4):
            r = X + 4 * i + d
            lo, hi = Fv + 8 * i + 2 * d, Fv + 8 * i + 2 * d + 1
            p.e(f"v_lshlrev_b32 v{lo}, 16, v{r}")
            p.e(f"v_and_b32 v{hi}, 0xffff0000, v{r}")
            p.e(f"v_add_f32 v{8+(2*d)%4}, v{8+(2*d)%4}, v{lo}")
            p.e(f"v_add_f32 v{8+(2*d+1)%4}, v{8+(2*d+1)%4}, v{hi}")
    def red8(a):
        p.e(f"v_add_f32 v8, v8, v9\nv_add_f32 v10, v10, v11\nv_add_f32 v{a}, v8, v10")
        p.e(f"v_add_f32_dpp v{a}, v{a}, v{a} quad_perm:[1,0,3,2] row_mask:0xf bank_mask:0xf")
        p.e(f"v_add_f32_dpp v{a}, v{a}, v{a} quad_perm:[2,3,0,1] row_mask:0xf bank_mask:0xf")
        p.e(f"v_add_f32_dpp v{a}, v{a}, v{a} row_half_mirror row_mask:0xf bank_mask:0xf")
        p.e(f"v_mul_f32 v{a}, {hx(f32(1.0/640))}, v{a}")
    red8(12)
    for a in range(4): p.e(f"v_mov_b32 v{8+a}, 0")
    for i in range(80):
        p.e(f"v_sub_f32 v{6+(i&1)}, v{Fv+i}, v12")
        p.e(f"v_fmac_f32 v{8+i%4}, v{6+(i&1)}, v{6+(i&1)}")
    red8(13)
    bf16r(p, 12, 12)
    bf16r(p, 13, 13)
    p.e(f"v_add_f32 v13, {hx(f32(1e-5))}, v13")
    bf16r(p, 13, 13)
    p.e("v_sqrt_f32 v13, v13")
    bf16r(p, 13, 13)
    p.e("v_rcp_f32 v13, v13")
    p.e(f"s_mul_i32 s31, {wg}, 40960")
    p.e(f"s_add_u32 s31, s31, {hx(WS_XN)}")
    for i in range(10):
        for d in range(4):
            r = X + 4 * i + d
            lo, hi = Fv + 8 * i + 2 * d, Fv + 8 * i + 2 * d + 1
            p.e(f"v_sub_f32 v{lo}, v{lo}, v12")
            p.e(f"v_sub_f32 v{hi}, v{hi}, v12")
            p.e(f"v_cvt_pk_bf16_f32 v{r}, v{lo}, v{hi}")
            p.e(f"v_lshlrev_b32 v{lo}, 16, v{r}")
            p.e(f"v_and_b32 v{hi}, 0xffff0000, v{r}")
            p.e(f"v_mul_f32 v{lo}, v{lo}, v13")
            p.e(f"v_mul_f32 v{hi}, v{hi}, v13")
            p.e(f"v_cvt_pk_bf16_f32 v{r}, v{lo}, v{hi}")
        p.e(f"buffer_store_dwordx4 {vr(X+4*i,4)}, v4, {sr(sWS,4)}, s31 offen {sc}")
        if i < 9: p.e(f"s_add_u32 s31, s31, 4096")
    p.e(f"v_lshlrev_b32 v5, 2, v1")
    p.e(f"s_lshl_b32 s32, {wg}, 7")
    p.e(f"s_add_u32 s33, s32, {hx(WS_STR)}")
    p.e(f"s_add_u32 s32, s32, {hx(WS_STM)}")
    p.e(f"v_cmp_eq_u32 vcc, 0, v2")
    p.e(f"s_and_saveexec_b64 s[34:35], vcc")
    p.e(f"buffer_store_dword v12, v5, {sr(sWS,4)}, s32 offen {sc}")
    p.e(f"buffer_store_dword v13, v5, {sr(sWS,4)}, s33 offen {sc}")
    p.e(f"s_mov_b64 exec, s[34:35]")

def emit_colsum(p, sW, sWS, c, sc=""):
    X = 16
    p.e(f"v_lshrrev_b32 v1, 2, v0")
    p.e(f"v_and_b32 v2, 3, v0")
    p.e(f"v_mul_u32_u24 v3, 3840, v1")
    p.e(f"v_lshl_add_u32 v3, v2, 4, v3")
    p.e(f"s_lshl_b32 s30, {c}, 6")
    for i in range(10):
        p.e(f"buffer_load_dwordx4 {vr(X+4*i,4)}, v3, {sr(sW,4)}, s30 offen")
        if i < 9: p.e(f"s_add_u32 s30, s30, {64*3840}")
    A = 64
    for a in range(8): p.e(f"v_mov_b32 v{A+a}, 0")
    for i in range(10):
        p.e(f"s_waitcnt vmcnt({9-i})")
        for d in range(4):
            r = X + 4 * i + d
            p.e(f"v_lshlrev_b32 v6, 16, v{r}")
            p.e(f"v_and_b32 v7, 0xffff0000, v{r}")
            p.e(f"v_add_f32 v{A+2*d}, v{A+2*d}, v6")
            p.e(f"v_add_f32 v{A+2*d+1}, v{A+2*d+1}, v7")
    for sh in (4, 8):
        for a in range(8):
            p.e(f"v_add_f32_dpp v{A+a}, v{A+a}, v{A+a} row_shr:{sh} row_mask:0xf bank_mask:0xf bound_ctrl:0")
    p.e(f"v_lshrrev_b32 v4, 4, v0")
    p.e(f"v_lshlrev_b32 v4, 7, v4")
    p.e(f"v_lshl_add_u32 v4, v2, 5, v4")
    p.e(f"v_and_b32 v5, 12, v0")
    p.e(f"v_cmp_eq_u32 vcc, 12, v5")
    p.e(f"s_and_saveexec_b64 s[34:35], vcc")
    p.e(f"ds_write_b128 v4, {vr(A,4)}")
    p.e(f"ds_write_b128 v4, {vr(A+4,4)} offset:16")
    p.e(f"s_mov_b64 exec, s[34:35]")
    p.e(f"s_waitcnt lgkmcnt(0)")
    p.e(f"s_barrier")
    p.e(f"v_and_b32 v4, 31, v0")
    p.e(f"v_lshlrev_b32 v4, 2, v4")
    for i in range(16):
        p.e(f"ds_read_b32 v{X+i}, v4 offset:{128*i}")
    p.e(f"s_waitcnt lgkmcnt(0)")
    for i in range(8): p.e(f"v_add_f32 v{X+i}, v{X+i}, v{X+8+i}")
    for i in range(4): p.e(f"v_add_f32 v{X+i}, v{X+i}, v{X+4+i}")
    for i in range(2): p.e(f"v_add_f32 v{X+i}, v{X+i}, v{X+2+i}")
    p.e(f"v_add_f32 v{X}, v{X}, v{X+1}")
    p.e(f"s_lshl_b32 s30, {c}, 7")
    p.e(f"s_add_u32 s30, s30, {hx(WS_CS)}")
    p.e(f"v_cmp_gt_u32 vcc, 32, v0")
    p.e(f"s_and_saveexec_b64 s[34:35], vcc")
    p.e(f"s_cbranch_execz L_cs_skip")
    p.e(f"buffer_store_dword v{X}, v4, {sr(sWS,4)}, s30 offen {sc}")
    p.label("L_cs_skip")
    p.e(f"s_mov_b64 exec, s[34:35]")

def kernel_k0(p):
    kernel_begin(p, "k0_kernel")
    p.e("s_cmp_ge_u32 s2, 124")
    p.e("s_cbranch_scc1 L_k0_end")
    p.e(f"s_load_dwordx2 s[4:5], s[0:1], {KA_X}")
    p.e(f"s_load_dwordx2 s[6:7], s[0:1], {KA_WQKV}")
    p.e(f"s_load_dwordx2 s[8:9], s[0:1], {KA_WS}")
    p.e("s_waitcnt lgkmcnt(0)")
    srd(p, 12, 4, SZ_X); srd(p, 16, 6, SZ_WQKV); srd(p, 20, 8, WS_SIZE)
    p.e("s_cmp_ge_u32 s2, 64")
    p.e("s_cbranch_scc1 L_k0_cs")
    emit_ln(p, 12, 20)
    p.e("s_endpgm")
    p.label("L_k0_cs")
    p.e("s_sub_u32 s3, s2, 64")
    emit_colsum(p, 16, 20, "s3")
    p.label("L_k0_end")
    p.e("s_endpgm")
    return ("k0_kernel", 124, 256, 2048, 144)
```

```python
from common import *
from k_qkv import interleave

ST3 = 5120
RING = 4 * ST3
RROW = 656
LDS_K3 = max(4 * RING, 4 * 32 * RROW)

def kernel_k3(p):
    kernel_begin(p, "k3_kernel")
    p.e("s_cmp_ge_u32 s2, 256")
    p.e("s_cbranch_scc1 L_k3_end")
    p.e(f"s_load_dwordx2 s[4:5], s[0:1], {KA_X}")
    p.e(f"s_load_dwordx2 s[6:7], s[0:1], {KA_WO}")
    p.e(f"s_load_dwordx4 s[8:11], s[0:1], {KA_WD}")
    p.e(f"s_load_dwordx2 s[44:45], s[0:1], {KA_WS}")
    sX, sW, sO, sWS = 12, 16, 20, 48
    sWave, sTT, sNT, kA, kB, sIt, mB, sInc, sN, sSw = 24, 25, 26, 27, 28, 29, 36, 37, 38, 39
    A = Alloc(1)
    lane, gA, lW = A(), A(), A()
    gB = A(5, 1); gT = A(5, 1)
    t0, t1, t2, t3 = A(), A(), A(), A()
    XR = A(10); XF = A(16); WF = A(40); acc = A(80)
    p.e("s_and_b32 s30, s2, 1\ns_lshl_b32 s30, s30, 1\ns_bfe_u32 s31, s2, 0x10003")
    p.e(f"s_add_u32 s{sNT}, s30, s31")
    p.e("s_bfe_u32 s30, s2, 0x20001\ns_lshl_b32 s30, s30, 4\ns_lshr_b32 s31, s2, 4")
    p.e(f"s_add_u32 s{sTT}, s30, s31")
    p.e(f"v_lshrrev_b32 v{t0}, 6, v0")
    p.e(f"v_and_b32 v{lane}, 63, v0")
    p.e(f"v_readfirstlane_b32 s{sWave}, v{t0}")
    p.e(f"v_lshlrev_b32 v{gA}, 4, v{lane}")
    for i in range(5):
        p.e(f"v_add_u32 v{t0}, {64*i}, v{lane}")
        p.e(f"v_mul_u32_u24 v{t1}, 3277, v{t0}")
        p.e(f"v_lshrrev_b32 v{t1}, 16, v{t1}")
        p.e(f"v_mul_u32_u24 v{t2}, 20, v{t1}")
        p.e(f"v_sub_u32 v{t0}, v{t0}, v{t2}")
        p.e(f"v_mul_u32_u24 v{t2}, 1280, v{t1}")
        p.e(f"v_lshl_add_u32 v{gB+i}, v{t0}, 4, v{t2}")
        p.e(f"v_lshrrev_b32 v{t2}, 2, v{t1}")
        p.e(f"v_mul_u32_u24 v{t2}, {16*1280}, v{t2}")
        p.e(f"v_add_u32 v{gT+i}, v{gB+i}, v{t2}")
    p.e(f"s_mul_i32 s{mB}, s{sWave}, {RING}")
    p.e(f"v_lshrrev_b32 v{t0}, 5, v{lane}")
    p.e(f"v_bfe_u32 v{t1}, v{lane}, 2, 2")
    p.e(f"v_lshl_add_u32 v{t0}, v{t0}, 2, v{t1}")
    p.e(f"v_mul_u32_u24 v{t0}, 320, v{t0}")
    p.e(f"v_bfe_u32 v{t1}, v{lane}, 4, 1")
    p.e(f"v_lshl_add_u32 v{t0}, v{t1}, 5, v{t0}")
    p.e(f"v_and_b32 v{t1}, 3, v{lane}")
    p.e(f"v_lshl_add_u32 v{t0}, v{t1}, 3, v{t0}")
    p.e(f"v_add_u32 v{lW}, s{mB}, v{t0}")
    p.e(f"v_lshrrev_b32 v{t0}, 3, v0")
    p.e(f"v_mul_u32_u24 v{t0}, 1280, v{t0}")
    p.e(f"v_and_b32 v{t1}, 7, v0")
    p.e(f"v_lshl_add_u32 v{t3}, v{t1}, 3, v{t0}")
    p.e(f"s_mul_i32 s40, s{sTT}, 40960\ns_mul_i32 s41, s{sNT}, 320\ns_add_u32 s40, s40, s41")
    p.e("s_waitcnt lgkmcnt(0)")
    srd(p, sX, 4, SZ_X); srd(p, sO, 10, SZ_X); srd(p, sWS, 44, WS_SIZE)
    for i in range(5):
        p.e(f"buffer_load_dwordx2 {vr(XR+2*i,2)}, v{t3}, {sr(sX,4)}, s40 offen offset:{64*i}")
    p.e(f"s_cmp_eq_u32 s{sWave}, 0")
    p.e(f"s_cselect_b32 s{sW}, s6, s8")
    p.e(f"s_cselect_b32 s{sW+1}, s7, s9")
    p.e(f"s_mov_b32 s42, {hx(SZ_WD)}\ns_mov_b32 s{sInc}, {16*1280}")
    p.e(f"s_cselect_b32 s42, {hx(SZ_WO)}, s42")
    p.e(f"s_cselect_b32 s{sInc}, {20*1280}, s{sInc}")
    p.e(f"s_cselect_b32 s{sN}, 10, 9")
    p.e(f"s_cselect_b32 s{sSw}, 7, 99")
    p.e(f"s_and_b32 s{sW+1}, s{sW+1}, 0xffff")
    p.e(f"s_mov_b32 s{sW+2}, s42")
    p.e(f"s_mov_b32 s{sW+3}, 0x00020000")
    p.e(f"s_mul_i32 s30, s{sTT}, 40960\ns_add_u32 s30, s30, {hx(WS_OO)}")
    p.e(f"s_mul_i32 s31, s{sTT}, {108*1024}\ns_add_u32 s31, s31, {hx(WS_HH - 36*1024)}")
    p.e(f"s_mul_i32 s32, s{sWave}, {36*1024}\ns_add_u32 s31, s31, s32")
    p.e(f"s_sub_u32 s33, s{sWave}, 1\ns_mul_i32 s33, s33, {36*16*1280}")
    p.e(f"s_cmp_eq_u32 s{sWave}, 0")
    p.e(f"s_cselect_b32 s{kA}, s30, s31")
    p.e(f"s_cselect_b32 s{kB}, 0, s33")
    p.e(f"s_add_u32 s{kB}, s{kB}, s41")
    sA = 52
    srd(p, sA, 44, WS_SIZE)
    def dma(b):
        g = []
        for i in range(5):
            g.append(f"s_add_u32 m0, s{mB}, {b*ST3+1024*i}\nbuffer_load_dwordx4 v{gB+i}, {sr(sW,4)}, s{kB} offen lds")
        g[-1] += f"\ns_add_u32 s{kB}, s{kB}, s{sInc}"
        return g
    def ldA(b):
        return f"buffer_load_dwordx4 {vr(XF+4*b,4)}, v{gA}, {sr(sA,4)}, s{kA} offen\ns_add_u32 s{kA}, s{kA}, 1024"
    def reads(b, buf):
        return [f"ds_read_b64_tr_b16 {vr(WF+20*buf+4*j+2*t,2)}, v{lW} offset:{b*ST3+2560*t+64*j}" for j in range(5) for t in range(2)]
    def mfmas(b, buf):
        return [f"v_mfma_f32_32x32x16_bf16 {vr(acc+16*j,16)}, {vr(WF+20*buf+4*j,4)}, {vr(XF+4*b,4)}, {vr(acc+16*j,16)}" for j in range(5)]
    for b in range(4):
        for g in dma(b): p.e(g)
        p.e(ldA(b))
    for i in range(80): p.e(f"v_mov_b32 v{acc+i}, 0")
    p.e("s_waitcnt vmcnt(18)")
    for g in reads(0, 0): p.e(g)
    p.e(f"s_mov_b32 s{sIt}, 0")
    p.e(f"s_sub_u32 s43, s{sN}, 1")
    p.raw(".p2align 3")
    p.label("L_k3_loop")
    p.e(f"s_cmp_lt_u32 s{sIt}, s43")
    p.e(f"s_cselect_b32 s{sW+2}, s42, 0")
    p.e(f"s_cselect_b32 s{sA+2}, {hx(WS_SIZE)}, 0")
    p.e(f"s_cmp_lg_u32 s{sIt}, s{sSw}")
    p.e("s_cbranch_scc1 L_k3_nosw")
    for i in range(5): p.e(f"v_mov_b32 v{gB+i}, v{gT+i}")
    p.e(f"s_add_u32 s{kB}, s41, {16*1280}")
    p.e(f"s_mov_b32 s{sInc}, {80*1280}")
    p.label("L_k3_nosw")
    for b in range(4):
        p.e("s_waitcnt vmcnt(12) lgkmcnt(0)")
        rd = reads((b + 1) % 4, (b + 1) & 1)
        dm = dma(b)
        fill = []
        for i in range(5): fill += rd[2 * i:2 * i + 2] + [dm[i]]
        for g in interleave(mfmas(b, b & 1), fill): p.e(g)
        p.e(ldA(b))
    p.e(f"s_add_u32 s{sIt}, s{sIt}, 1")
    p.e(f"s_cmp_lt_u32 s{sIt}, s{sN}")
    p.e("s_cbranch_scc1 L_k3_loop")
    p.e("s_waitcnt vmcnt(0) lgkmcnt(0)")
    p.e("s_barrier")
    p.e(f"v_and_b32 v{t0}, 31, v{lane}")
    p.e(f"v_mul_u32_u24 v{t0}, {RROW}, v{t0}")
    p.e(f"v_lshrrev_b32 v{t1}, 5, v{lane}")
    p.e(f"v_lshl_add_u32 v{t0}, v{t1}, 4, v{t0}")
    p.e(f"s_mul_i32 s30, s{sWave}, {32*RROW}")
    p.e(f"v_add_u32 v{t0}, s30, v{t0}")
    for j in range(5):
        for g in range(4):
            p.e(f"ds_write_b128 v{t0}, {vr(acc+16*j+4*g,4)} offset:{128*j+32*g}")
    p.e(f"v_lshrrev_b32 v{t0}, 3, v0")
    p.e(f"v_mul_u32_u24 v{t0}, {RROW}, v{t0}")
    p.e(f"v_and_b32 v{t1}, 7, v0")
    p.e(f"v_lshl_add_u32 v{t0}, v{t1}, 4, v{t0}")
    p.e("s_waitcnt lgkmcnt(0)")
    p.e("s_barrier")
    for i in range(5):
        for w in range(4):
            p.e(f"ds_read_b128 {vr(acc+16*i+4*w,4)}, v{t0} offset:{w*32*RROW+128*i}")
    for i in range(5):
        p.e(f"s_waitcnt lgkmcnt({min(15, 16-4*i)})")
        a = acc + 16 * i
        x = XR + 2 * i
        p.e(f"v_lshlrev_b32 v{t1}, 16, v{x}\nv_and_b32 v{t2}, 0xffff0000, v{x}")
        p.e(f"v_add_f32 v{a}, v{a}, v{t1}\nv_add_f32 v{a+1}, v{a+1}, v{t2}")
        p.e(f"v_lshlrev_b32 v{t1}, 16, v{x+1}\nv_and_b32 v{t2}, 0xffff0000, v{x+1}")
        p.e(f"v_add_f32 v{a+2}, v{a+2}, v{t1}\nv_add_f32 v{a+3}, v{a+3}, v{t2}")
        for k in range(4):
            p.e(f"v_add_f32 v{a+k}, v{a+k}, v{a+4+k}")
            p.e(f"v_add_f32 v{a+8+k}, v{a+8+k}, v{a+12+k}")
        for k in range(4): p.e(f"v_add_f32 v{a+k}, v{a+k}, v{a+8+k}")
        p.e(f"v_cvt_pk_bf16_f32 v{a}, v{a}, v{a+1}")
        p.e(f"v_cvt_pk_bf16_f32 v{a+1}, v{a+2}, v{a+3}")
        p.e(f"buffer_store_dwordx2 {vr(a,2)}, v{t3}, {sr(sO,4)}, s40 offen offset:{64*i}")
    p.label("L_k3_end")
    p.e("s_endpgm")
    return ("k3_kernel", 256, 256, LDS_K3, A.hi)
```

```python
from common import *

STAGE = 18432
NST = 4
LDS_G1 = STAGE * NST

def interleave(main, fill):
    out = []
    n, m = len(main), len(fill)
    k = 0
    for i, x in enumerate(main):
        out.append(x)
        tgt = (m * (i + 1)) // n
        while k < tgt:
            out.append(fill[k]); k += 1
    return out

def emit_g1_variant(p, variant, R, S):
    acc, XF, WF = R["acc"], R["XF"], R["WF"]
    sX, sW = S["sX"], S["sW"]
    def dma(b):
        g = []
        base = b * STAGE
        g.append(f"s_add_u32 m0, s{S['mA']}, {base}\nbuffer_load_dwordx4 v{R['gA']}, {sr(sX,4)}, s{S['kA']} offen lds")
        g.append(f"s_add_u32 m0, s{S['mA']}, {base+1024}\nbuffer_load_dwordx4 v{R['gA']+1}, {sr(sX,4)}, s{S['kA']} offen lds")
        g.append(f"s_add_u32 m0, s{S['mB']}, {base}\nbuffer_load_dwordx4 v{R['gB']}, {sr(sW,4)}, s{S['kB']} offen lds")
        g.append(f"s_add_u32 m0, s{S['mB']}, {base+1024}\nbuffer_load_dwordx4 v{R['gB']+1}, {sr(sW,4)}, s{S['kB']} offen lds")
        g.append(f"s_add_u32 m0, s{S['mB']}, {base+2048}\ns_mov_b64 exec, 0xffffffff\nbuffer_load_dwordx4 v{R['gB']+2}, {sr(sW,4)}, s{S['kB']} offen lds\ns_mov_b64 exec, -1\n"
                 f"s_add_u32 s{S['kA']}, s{S['kA']}, 64\ns_add_u32 s{S['kB']}, s{S['kB']}, {32*3840}")
        return g
    def reads(b, sub, buf):
        hi = 1 if b >= 2 else 0
        off = (b - 2 * hi) * STAGE
        g = [f"ds_read_b128 {vr(XF+4*buf,4)}, v{R['lX']+2*hi+sub} offset:{off}"]
        for j in range(5):
            for t in range(2):
                if variant == "qk":
                    a = R["lW"] + hi if j < 4 else R["lT"] + hi
                    joff = 40 * j if j < 4 else 0
                else:
                    a = R["lW"] + hi; joff = 64 * j
                o = off + 8192 + (16 * sub + 4 * t) * 320 + joff
                g.append(f"ds_read_b64_tr_b16 {vr(WF+20*buf+4*j+2*t,2)}, v{a} offset:{o}")
        return g
    def mfmas(buf):
        g = []
        for j in range(5):
            x, w = vr(XF + 4 * buf, 4), vr(WF + 20 * buf + 4 * j, 4)
            a, b = (w, x) if variant == "qk" else (x, w)
            g.append(f"v_mfma_f32_32x32x16_bf16 {vr(acc+16*j,16)}, {a}, {b}, {vr(acc+16*j,16)}")
        return g
    for b in range(NST):
        for g in dma(b): p.e(g)
    for i in range(80): p.e(f"v_mov_b32 v{acc+i}, 0")
    p.e("s_waitcnt vmcnt(15)")
    p.e("s_barrier")
    for g in reads(0, 0, 0): p.e(g)
    p.e(f"s_mov_b32 s{S['it']}, 0")
    L = f"L_g1_{variant}_loop"
    p.raw(".p2align 3")
    p.label(L)
    p.e(f"s_cmp_lt_u32 s{S['it']}, 4")
    p.e(f"s_cselect_b32 s{sX+2}, {hx(SZ_X)}, 0")
    p.e(f"s_cselect_b32 s{sW+2}, {hx(SZ_WQKV)}, 0")
    for b in range(NST):
        p.e("s_waitcnt lgkmcnt(0)")
        for g in interleave(mfmas(0), reads(b, 1, 1)): p.e(g)
        p.e("s_waitcnt vmcnt(10) lgkmcnt(0)")
        p.e("s_barrier")
        rd = reads((b + 1) % NST, 0, 0)
        dm = dma(b)
        fill = []
        for i in range(5):
            fill += rd[2 * i:2 * i + 2] + ([rd[10]] if i == 0 else []) + [dm[i]]
        for g in interleave(mfmas(1), fill): p.e(g)
    p.e(f"s_add_u32 s{S['it']}, s{S['it']}, 1")
    p.e(f"s_cmp_lt_u32 s{S['it']}, 5")
    p.e(f"s_cbranch_scc1 {L}")
    p.e("s_waitcnt lgkmcnt(0)")

def kernel_k1(p):
    kernel_begin(p, "k1_kernel")
    p.e("s_cmp_ge_u32 s2, 192")
    p.e("s_cbranch_scc1 L_k1_end")
    p.e(f"s_load_dwordx2 s[4:5], s[0:1], {KA_X}")
    p.e(f"s_load_dwordx2 s[6:7], s[0:1], {KA_WQKV}")
    p.e(f"s_load_dwordx2 s[8:9], s[0:1], {KA_WS}")
    S = dict(sX=12, sW=16, sWS=20, wave=24, mt=25, nt=26, kA=27, kB=28, it=29, mA=36, mB=37)
    A = Alloc(1)
    R = {}
    R["lane"] = A(); R["hh"] = A(); R["m"] = A()
    R["gA"] = A(2); R["gB"] = A(3, 1)
    R["lX"] = A(4, 1); R["lW"] = A(2, 1); R["lT"] = A(2, 1)
    t0, t1, t2, t3 = A(), A(), A(), A()
    R["XF"] = A(8); R["WF"] = A(40); R["acc"] = A(80)
    R["pre"] = A(80)
    R["st"] = A(2)
    lane, hh, m = R["lane"], R["hh"], R["m"]
    p.e("s_and_b32 s30, s2, 7\ns_lshr_b32 s31, s2, 3")
    p.e("s_lshr_b32 s32, s30, 1\ns_lshl_b32 s32, s32, 2\ns_and_b32 s33, s31, 3")
    p.e(f"s_add_u32 s{S['mt']}, s32, s33")
    p.e("s_and_b32 s32, s30, 1\ns_mul_i32 s32, s32, 6\ns_lshr_b32 s33, s31, 2")
    p.e(f"s_add_u32 s{S['nt']}, s32, s33")
    p.e(f"v_lshrrev_b32 v{t0}, 6, v0")
    p.e(f"v_and_b32 v{lane}, 63, v0")
    p.e(f"v_readfirstlane_b32 s{S['wave']}, v{t0}")
    p.e(f"v_lshrrev_b32 v{hh}, 5, v{lane}")
    p.e(f"v_and_b32 v{m}, 31, v{lane}")
    p.e(f"s_lshl_b32 s{S['mA']}, s{S['wave']}, 11")
    p.e(f"s_mul_i32 s{S['mB']}, s{S['wave']}, 2560")
    p.e(f"s_add_u32 s{S['mB']}, s{S['mB']}, 8192")
    for i in range(2):
        p.e(f"v_lshrrev_b32 v{t0}, 2, v{lane}")
        if i: p.e(f"v_add_u32 v{t0}, 16, v{t0}")
        p.e(f"v_lshrrev_b32 v{t1}, 2, v{t0}")
        p.e(f"v_xor_b32 v{t1}, v{t1}, v{lane}")
        p.e(f"v_and_b32 v{t1}, 3, v{t1}")
        p.e(f"v_mul_u32_u24 v{t0}, 1280, v{t0}")
        p.e(f"v_lshl_add_u32 v{R['gA']+i}, v{t1}, 4, v{t0}")
    p.e(f"s_lshl_b32 s30, s{S['mt']}, 2\ns_add_u32 s30, s30, s{S['wave']}")
    p.e(f"s_mov_b32 s38, s30")
    p.e(f"s_mul_i32 s{S['kA']}, s30, {32*1280}")
    for i in range(3):
        p.e(f"v_add_u32 v{t0}, {64*i}, v{lane}")
        p.e(f"v_mul_u32_u24 v{t1}, 3277, v{t0}")
        p.e(f"v_lshrrev_b32 v{t1}, 16, v{t1}")
        p.e(f"v_mul_u32_u24 v{t2}, 20, v{t1}")
        p.e(f"v_sub_u32 v{t0}, v{t0}, v{t2}")
        p.e(f"v_mul_u32_u24 v{t1}, 3840, v{t1}")
        p.e(f"v_lshl_add_u32 v{R['gB']+i}, v{t0}, 4, v{t1}")
    p.e(f"s_mul_i32 s{S['kB']}, s{S['wave']}, {8*3840}")
    p.e(f"s_mul_i32 s30, s{S['nt']}, 320")
    p.e(f"s_add_u32 s{S['kB']}, s{S['kB']}, s30")
    p.e(f"v_lshrrev_b32 v{t0}, 2, v{m}")
    p.e(f"v_and_b32 v{t0}, 3, v{t0}")
    p.e(f"v_xor_b32 v{t0}, v{t0}, v{hh}")
    p.e(f"v_lshlrev_b32 v{t1}, 6, v{m}")
    p.e(f"v_add_u32 v{t1}, s{S['mA']}, v{t1}")
    p.e(f"v_lshl_add_u32 v{R['lX']}, v{t0}, 4, v{t1}")
    p.e(f"v_xor_b32 v{R['lX']+1}, 32, v{R['lX']}")
    p.e(f"v_add_u32 v{R['lX']+2}, {2*STAGE}, v{R['lX']}")
    p.e(f"v_add_u32 v{R['lX']+3}, {2*STAGE}, v{R['lX']+1}")
    p.e(f"v_bfe_u32 v{t0}, v{lane}, 2, 2")
    p.e(f"v_lshl_add_u32 v{t0}, v{hh}, 3, v{t0}")
    p.e(f"v_mul_u32_u24 v{t0}, 320, v{t0}")
    p.e(f"v_bfe_u32 v{t1}, v{lane}, 4, 1")
    p.e(f"v_and_b32 v{t2}, 3, v{lane}")
    p.e("s_waitcnt lgkmcnt(0)")
    srd(p, 12, 4, SZ_X); srd(p, 16, 6, SZ_WQKV); srd(p, 20, 8, WS_SIZE)
    sWS = S["sWS"]
    pre, st, acc = R["pre"], R["st"], R["acc"]
    p.e(f"s_cmp_ge_u32 s{S['nt']}, 8")
    p.e("s_cbranch_scc1 L_k1_v")
    p.e(f"v_mul_u32_u24 v{t3}, 160, v{t1}")
    p.e(f"v_add_u32 v{t3}, v{t3}, v{t0}")
    p.e(f"v_lshl_add_u32 v{R['lW']}, v{t2}, 3, v{t3}")
    p.e(f"v_add_u32 v{R['lW']+1}, {2*STAGE}, v{R['lW']}")
    p.e(f"v_mul_u32_u24 v{t2}, 40, v{t2}")
    p.e(f"v_add3_u32 v{R['lT']}, v{t3}, v{t2}, 32")
    p.e(f"v_add_u32 v{R['lT']+1}, {2*STAGE}, v{R['lT']}")
    p.e(f"v_lshlrev_b32 v{t0}, 2, v{m}")
    p.e(f"s_lshl_b32 s30, s38, 7")
    p.e(f"s_add_u32 s31, s30, {hx(WS_STR)}\ns_add_u32 s30, s30, {hx(WS_STM)}")
    p.e(f"buffer_load_dword v{st}, v{t0}, {sr(sWS,4)}, s30 offen")
    p.e(f"buffer_load_dword v{st+1}, v{t0}, {sr(sWS,4)}, s31 offen")
    p.e(f"s_mul_i32 s30, s{S['nt']}, 640\ns_add_u32 s30, s30, {hx(WS_CS)}")
    p.e(f"v_lshlrev_b32 v{t0}, 4, v{hh}")
    p.e(f"v_mul_u32_u24 v{t1}, 80, v{hh}")
    for j in range(5):
        for g in range(4):
            if j < 4:
                o = (20 * (j + 4 * (g >> 1)) + 8 * (g & 1)) * 4; a = t0
            else:
                o = (40 * g + 16) * 4; a = t1
            p.e(f"buffer_load_dwordx4 {vr(pre+16*j+4*g,4)}, v{a}, {sr(sWS,4)}, s30 offen offset:{o}")
    emit_g1_variant(p, "qk", R, S)
    p.e(f"s_cmp_lt_u32 s{S['nt']}, 4")
    p.e(f"s_cselect_b32 s30, {hx(f32(QSCALE))}, 1.0")
    p.e(f"s_cselect_b32 s31, {hx(WS_QM)}, {hx(WS_KM)}")
    p.e(f"v_mul_f32 v{st+1}, s30, v{st+1}")
    p.e(f"v_mul_f32 v{st}, v{st}, v{st+1}")
    p.e(f"v_sub_f32 v{st}, 0, v{st}")
    p.e(f"s_and_b32 s32, s{S['nt']}, 3")
    p.e(f"s_lshl_b32 s33, s32, 19")
    p.e(f"s_add_u32 s33, s33, s31")
    p.e(f"s_lshl_b32 s34, s38, 10")
    p.e(f"s_add_u32 s33, s33, s34")
    p.e(f"s_lshl_b32 s35, s32, 17")
    p.e(f"s_add_u32 s35, s35, s31")
    p.e(f"s_add_u32 s35, s35, {hx(WS_QT-WS_QM)}")
    p.e(f"s_lshl_b32 s34, s38, 8")
    p.e(f"s_add_u32 s35, s35, s34")
    p.e(f"v_lshlrev_b32 v{t0}, 4, v{lane}")
    p.e(f"v_lshlrev_b32 v{t1}, 14, v{hh}")
    p.e(f"v_lshl_add_u32 v{t1}, v{m}, 3, v{t1}")
    for j in range(5):
        for i in range(16):
            p.e(f"v_mul_f32 v{pre+16*j+i}, v{pre+16*j+i}, v{st}")
        for i in range(16):
            p.e(f"v_fmac_f32 v{pre+16*j+i}, v{acc+16*j+i}, v{st+1}")
        o = acc + 16 * j
        for i in range(8):
            p.e(f"v_cvt_pk_bf16_f32 v{o+i}, v{pre+16*j+2*i}, v{pre+16*j+2*i+1}")
        if j < 4:
            p.e(f"s_add_u32 s34, s33, {j*65536}")
            p.e(f"buffer_store_dwordx4 {vr(o,4)}, v{t0}, {sr(sWS,4)}, s34 offen")
            p.e(f"s_add_u32 s34, s33, {(j+4)*65536}")
            p.e(f"buffer_store_dwordx4 {vr(o+4,4)}, v{t0}, {sr(sWS,4)}, s34 offen")
        else:
            for g in range(4):
                p.e(f"s_add_u32 s34, s35, {2*g*16384}")
                p.e(f"buffer_store_dwordx2 {vr(o+2*g,2)}, v{t1}, {sr(sWS,4)}, s34 offen")
    p.e("s_endpgm")
    p.label("L_k1_v")
    p.e(f"v_lshl_add_u32 v{t3}, v{t1}, 5, v{t0}")
    p.e(f"v_lshl_add_u32 v{R['lW']}, v{t2}, 3, v{t3}")
    p.e(f"v_add_u32 v{R['lW']+1}, {2*STAGE}, v{R['lW']}")
    p.e(f"v_lshlrev_b32 v{t0}, 4, v{hh}")
    p.e(f"s_lshl_b32 s30, s38, 7")
    p.e(f"s_add_u32 s31, s30, {hx(WS_STR)}\ns_add_u32 s30, s30, {hx(WS_STM)}")
    for g in range(4):
        p.e(f"buffer_load_dwordx4 {vr(pre+4*g,4)}, v{t0}, {sr(sWS,4)}, s30 offen offset:{32*g}")
        p.e(f"buffer_load_dwordx4 {vr(pre+16+4*g,4)}, v{t0}, {sr(sWS,4)}, s31 offen offset:{32*g}")
    p.e(f"s_mul_i32 s30, s{S['nt']}, 640\ns_add_u32 s30, s30, {hx(WS_CS)}")
    p.e(f"v_lshlrev_b32 v{t0}, 2, v{m}")
    for j in range(5):
        p.e(f"buffer_load_dword v{pre+32+j}, v{t0}, {sr(sWS,4)}, s30 offen offset:{128*j}")
    emit_g1_variant(p, "v", R, S)
    for i in range(16):
        p.e(f"v_mul_f32 v{pre+i}, v{pre+i}, v{pre+16+i}")
        p.e(f"v_sub_f32 v{pre+i}, 0, v{pre+i}")
    p.e(f"s_sub_u32 s32, s{S['nt']}, 8")
    p.e(f"s_mul_i32 s33, s32, {8*81920}")
    p.e(f"s_mul_i32 s34, s38, 1280")
    p.e(f"s_add_u32 s33, s33, s34")
    p.e(f"s_add_u32 s33, s33, {hx(WS_VT)}")
    tmp = pre + 40
    for j in range(5):
        p.e(f"v_add_u32 v{t0}, {32*j}, v{m}")
        p.e(f"v_mul_u32_u24 v{t1}, 205, v{t0}")
        p.e(f"v_lshrrev_b32 v{t1}, 12, v{t1}")
        p.e(f"v_mul_u32_u24 v{t2}, 20, v{t1}")
        p.e(f"v_sub_u32 v{t0}, v{t0}, v{t2}")
        p.e(f"v_mul_u32_u24 v{t1}, {hx(81920)}, v{t1}")
        p.e(f"v_lshl_add_u32 v{t1}, v{t0}, 4, v{t1}")
        p.e(f"v_mul_u32_u24 v{t2}, 320, v{hh}")
        p.e(f"v_add_u32 v{t3}, v{t1}, v{t2}")
        for i in range(16):
            p.e(f"v_mul_f32 v{tmp+i}, v{pre+i}, v{pre+32+j}")
        for i in range(16):
            p.e(f"v_fmac_f32 v{tmp+i}, v{acc+16*j+i}, v{pre+16+i}")
        o = acc + 16 * j
        for i in range(8):
            p.e(f"v_cvt_pk_bf16_f32 v{o+i}, v{tmp+2*i}, v{tmp+2*i+1}")
        p.e(f"buffer_store_dwordx4 {vr(o,4)}, v{t3}, {sr(sWS,4)}, s33 offen")
        p.e(f"buffer_store_dwordx4 {vr(o+4,4)}, v{t3}, {sr(sWS,4)}, s33 offen offset:640")
    p.label("L_k1_end")
    p.e("s_endpgm")
    return ("k1_kernel", 192, 256, LDS_G1, A.hi)
```

```python
import sys
from common import *
import k_ln, k_qkv

def build(kernels, out):
    p = Prog()
    infos = [k(p) for k in kernels]
    n = p.pad(verbose="-v" in sys.argv)
    hdr = open("cdna_kernels/" + NAME + ".s.ref").read().split("; Override launch")[0]
    s = hdr
    for name, g, b, lds, vg in infos:
        s += f"; @launch kernel={name} grid=({g},1,1) block=({b},1,1) lds={lds}\n"
    s += '.amdgcn_target "amdgcn-amd-amdhsa--gfx950"\n.text\n'
    s += p.text()
    s += '.section .rodata,"a"\n'
    seen = set()
    for name, g, b, lds, vg in infos:
        if name in seen: continue
        seen.add(name)
        s += kd(name, vg)
    open(out, "w").write(s)
    print("pads inserted:", n, "| kernels:", infos)

if __name__ == "__main__":
    ks = [k_ln.kernel_k0, k_qkv.kernel_k1]
    try:
        import k_att
        ks.append(k_att.kernel_k2)
        import k_out
        ks.append(k_out.kernel_k3)
    except ImportError as e:
        print("partial:", e)
    build(ks, "out.s")
```
